```python
import torch

def _softmax(x, axis=-1):
    return torch.softmax(x, dim=axis)
def _gelu(x):
    return torch.nn.functional.gelu(x, approximate="tanh")
def _silu(x):
    return torch.nn.functional.silu(x)
def _sigmoid(x):
    return torch.sigmoid(x)
def _layernorm(x, axis=-1, eps=1e-5):
    m = x.mean(dim=axis, keepdim=True)
    v = x.var(dim=axis, keepdim=True, unbiased=False)
    return (x - m) / torch.sqrt(v + eps)
def _scatter_add(tgt, idx, src, axis=0):
    return tgt.clone().index_add_(axis, idx, src)
def _segment_sum(src, seg, n):
    out = torch.zeros((n,) + src.shape[1:], dtype=src.dtype)
    return out.index_add_(0, seg, src)
def _pad(x, pw):
    flat = tuple(v for pair in reversed(pw) for v in pair)
    return torch.nn.functional.pad(x, flat)

kernel_name = 'interleave_layers__linear_attn_block__glu_gated_bilinear__prompt'

def setup_inputs():

    _w = (lambda a: (lambda t: t.to(torch.bfloat16) if t.is_floating_point() else t)(torch.as_tensor(a)))
    def _A_setup():
        B, S, D = 1, 2048, 512
        return {
            "x": _w((lambda *s: torch.randn(*s, dtype=torch.bfloat16) * 0.05)(B, S, D)),
            "wqkv": _w((lambda *s: torch.randn(*s, dtype=torch.bfloat16) * 0.05)(D, 3 * D)),
            "wo": _w((lambda *s: torch.randn(*s, dtype=torch.bfloat16) * 0.05)(D, D)),
        }
    _A_in = _A_setup()

    def _B_setup():
        B, S, D, F = 1, 2048, 512, 1792
        return {
            "x": _w((lambda *s: torch.randn(*s, dtype=torch.bfloat16) * 0.05)(B, S, D)),
            "w_gate": _w((lambda *s: torch.randn(*s, dtype=torch.bfloat16) * 0.4)(D, F) * (D ** -0.5)),
            "w_up": _w((lambda *s: torch.randn(*s, dtype=torch.bfloat16) * 0.4)(D, F) * (D ** -0.5)),
            "w_down": _w((lambda *s: torch.randn(*s, dtype=torch.bfloat16) * 0.4)(F, D) * (F ** -0.5)),
        }
    _B_in = _B_setup()

    return {
        "A_x": _A_in["x"],
        "A_wqkv": _A_in["wqkv"],
        "A_wo": _A_in["wo"],
        "B_x": _B_in["x"],
        "B_w_gate": _B_in["w_gate"],
        "B_w_up": _B_in["w_up"],
        "B_w_down": _B_in["w_down"],
    }

def reference(A_x, A_wqkv, A_wo, B_x, B_w_gate, B_w_up, B_w_down):
    def _A_ref(x, wqkv, wo):
        B, S, D = x.shape
        H = 32; Dh = D // H
        qkv = (lambda x, *d: x.permute(*d))((x @ wqkv).reshape(B, S, 3, H, Dh), 2, 0, 3, 1, 4)
        q, k, v = qkv[0], qkv[1], qkv[2]
        phi = lambda t: torch.where(t > 0, t + 1, torch.exp(t)) + 1e-6
        pq, pk = phi(q), phi(k)
        kv = torch.einsum("bhsd,bhse->bhde", pk, v)
        z = torch.einsum("bhsd->bhd", pk)
        num = torch.einsum("bhqd,bhde->bhqe", pq, kv)
        den = torch.einsum("bhqd,bhd->bhq", pq, z)[..., None] + 1e-6
        o = num / den
        return (lambda x, *d: x.permute(*d))(o, 0, 2, 1, 3).reshape(B, S, D) @ wo

    def _B_ref(x, w_gate, w_up, w_down):
        g = torch.einsum("bsd,df->bsf", x, w_gate)
        u = torch.einsum("bsd,df->bsf", x, w_up)
        h = g * u
        return torch.einsum("bsf,fd->bsd", h, w_down)

    x = A_x
    x = x + _A_ref(_layernorm(x, axis=-1), A_wqkv, A_wo)
    x = x + _B_ref(_layernorm(x, axis=-1), B_w_gate, B_w_up, B_w_down)
    x = x + _A_ref(_layernorm(x, axis=-1), A_wqkv, A_wo)
    x = x + _B_ref(_layernorm(x, axis=-1), B_w_gate, B_w_up, B_w_down)
    return x
```

```python
import re

_REG = re.compile(r'^(-|abs\()?([vas])(?:(\d+)|\[(\d+):(\d+)\])\)?$')

def regs_of(op):
    op = op.strip()
    if op in ('vcc',): return {('s', 106), ('s', 107)}
    if op == 'vcc_lo': return {('s', 106)}
    if op == 'vcc_hi': return {('s', 107)}
    if op == 'exec': return {('s', 126), ('s', 127)}
    if op == 'exec_lo': return {('s', 126)}
    if op == 'exec_hi': return {('s', 127)}
    if op == 'm0': return {('s', 124)}
    m = _REG.match(op)
    if not m: return set()
    k = m.group(2)
    if m.group(3) is not None: return {(k, int(m.group(3)))}
    return {(k, i) for i in range(int(m.group(4)), int(m.group(5)) + 1)}

TRANS = ('v_exp_f32', 'v_log_f32', 'v_rcp_f32', 'v_rsq_f32', 'v_sqrt_f32', 'v_sin_f32', 'v_cos_f32')
NODST_S = ('s_cmp', 's_waitcnt', 's_barrier', 's_branch', 's_cbranch', 's_nop', 's_setprio', 's_sleep', 's_endpgm', 's_bitcmp')

class Ins:
    __slots__ = ('mn', 'cls', 'wr', 'rd', 'srcc', 'ab', 'states', 'data', 'passes', 'lds')

def classify(text):
    t = text.split(';')[0].strip()
    parts = t.split(None, 1)
    mn = parts[0]
    rest = parts[1] if len(parts) > 1 else ''
    ops = [o.strip() for o in re.split(r',(?![^\[]*\])', rest)] if rest else []
    mods = []
    if ops:
        lp = ops[-1].split()
        ops[-1] = lp[0] if lp else ''
        mods = lp[1:]
    I = Ins(); I.mn = mn; I.wr = set(); I.rd = set(); I.srcc = set(); I.ab = set(); I.states = 1; I.data = set(); I.passes = 0; I.lds = False
    R = [regs_of(o) for o in ops]
    if mn.startswith('v_mfma'):
        I.cls = 'mfma'; I.wr = R[0]; I.ab = R[1] | R[2]; I.srcc = R[3]; I.rd = I.ab | I.srcc
        I.passes = 8 if '32x32' in mn else 4
    elif mn.startswith('v_'):
        I.cls = 'trans' if mn.replace('_e32', '').replace('_e64', '') in TRANS else 'valu'
        if mn.startswith('v_permlane') and 'swap' in mn:
            I.wr = R[0] | R[1]; I.rd = R[0] | R[1]
        elif mn.startswith('v_cmp'):
            I.wr = R[0]; I.rd = set().union(*R[1:])
            if mn.startswith('v_cmpx'): I.wr |= regs_of('exec')
        elif mn.startswith(('v_add_co', 'v_sub_co', 'v_addc_co', 'v_subb_co')):
            I.wr = R[0] | R[1]; I.rd = set().union(*R[2:])
        else:
            I.wr = R[0]; I.rd = set().union(*R[1:]) if len(R) > 1 else set()
            if mn.startswith('v_dot2c'): I.ab = set(I.rd)
            if mn.startswith(('v_fmac', 'v_dot2c', 'v_pk_fmac', 'v_writelane')): I.rd |= R[0]
            if 'dpp' in mn or any(m.startswith(('row_', 'quad_perm', 'wave_')) for m in mods):
                I.cls = 'dpp'; I.rd |= R[0]
    elif mn.startswith('ds_'):
        I.cls = 'ds'
        if mn.startswith(('ds_read', 'ds_bpermute', 'ds_permute', 'ds_swizzle')) or '_rtn' in mn:
            I.wr = R[0]; I.rd = set().union(*R[1:])
        else:
            I.rd = set().union(*R)
    elif mn.startswith(('buffer_', 'global_')):
        I.cls = 'vmem'
        if 'lds' in mods or mn.startswith('global_load_lds'):
            I.rd = set().union(*R) | regs_of('m0'); I.lds = True
        elif '_load' in mn:
            I.wr = R[0]; I.rd = set().union(*R[1:])
        elif '_store' in mn or 'atomic' in mn:
            I.rd = set().union(*R) if R else set()
            if mn.startswith('buffer_') and R:
                I.data = R[0]
                if 'atomic' in mn and 'sc0' in mods: I.wr = R[0]
            elif R:
                if 'atomic' in mn and 'sc0' in mods:
                    I.wr = R[0]; I.rd = set().union(*R[1:]); I.data = R[2]
                else:
                    I.data = R[1]
            if not ('x3' in mn or 'x4' in mn): I.data = set()
    elif mn.startswith('s_'):
        I.cls = 'smem' if mn.startswith(('s_load', 's_buffer_load', 's_atomic', 's_memtime', 's_memrealtime')) else 'salu'
        if mn == 's_nop':
            I.states = int(ops[0], 0) + 1
        if mn.startswith(NODST_S):
            I.rd = set().union(*R) if R else set()
        else:
            I.wr = R[0] if R else set(); I.rd = set().union(*R[1:]) if len(R) > 1 else set()
            if 'saveexec' in mn: I.wr |= regs_of('exec')
            if mn.startswith('s_atomic'): I.rd |= R[0]
    else:
        raise ValueError('unknown instr ' + text)
    return I

VALU = ('valu', 'trans', 'dpp')
EXEC = regs_of('exec')

def need(P, X):
    n = 0
    pv = P.cls in VALU
    if pv:
        wv = {r for r in P.wr if r[0] != 's'}
        ws = {r for r in P.wr if r[0] == 's'}
        if X.cls == 'mfma' and (wv & X.rd): n = max(n, 2)
        if X.cls == 'mfma' and (ws & EXEC): n = max(n, 4)
        if X.cls == 'dpp' and (wv & X.rd): n = max(n, 2)
        if X.cls == 'dpp' and (ws & EXEC): n = max(n, 5)
        if X.mn.startswith('v_permlane') and (wv & X.rd): n = max(n, 2)
        if X.mn.startswith('v_permlane') and (ws & EXEC): n = max(n, 4)
        if X.mn.startswith(('v_readfirstlane', 'v_readlane')) and (wv & X.rd): n = max(n, 1)
        if X.mn.startswith(('v_readfirstlane', 'v_readlane', 'v_writelane')) and (ws & EXEC): n = max(n, 4)
        if X.mn.startswith(('v_readlane', 'v_writelane')) and (ws & X.rd): n = max(n, 4)
        if X.cls in VALU and (ws & X.rd): n = max(n, 2)
        if X.cls in VALU and X.mn.startswith('v_cndmask') and (ws & regs_of('vcc')): n = max(n, 2)
        if X.cls == 'vmem' and (ws & X.rd): n = max(n, 5)
        if X.cls in ('salu', 'smem') and (ws & X.rd): n = max(n, 2)
        if P.cls == 'trans' and X.cls in ('valu', 'dpp', 'mfma', 'vmem', 'ds') and (wv & X.rd): n = max(n, 1)
    if P.cls == 'mfma':
        p8 = P.passes == 8
        if X.cls == 'mfma':
            if P.wr & X.ab: n = max(n, 12 if p8 else 8)
            if P.wr & X.srcc:
                if not (P.wr == X.srcc and P.passes == X.passes): n = max(n, 10 if p8 else 6)
            elif P.wr & X.wr:
                n = max(n, 10 if p8 else 6)
        elif X.cls in VALU or X.cls in ('vmem', 'ds'):
            if P.wr & (X.rd | X.wr): n = max(n, 12 if p8 else 8)
            if X.cls in VALU and (P.srcc & X.wr): n = max(n, 7 if p8 else 3)
            if X.cls in ('vmem', 'ds') and (P.srcc & X.wr): n = max(n, 7 if p8 else 3)
    if P.mn.startswith('v_dot') and (P.wr & (X.rd | X.wr)):
        if not (X.mn == P.mn and X.wr == P.wr and X.mn.startswith('v_dot2c') and not (P.wr & X.ab)): n = max(n, 3)
    if P.cls == 'vmem' and P.data and (P.data & X.wr): n = max(n, 2)
    if P.cls == 'salu' and (('s', 124) in P.wr) and (X.lds): n = max(n, 1)
    if P.cls == 'salu' and (P.wr & EXEC) and X.cls in ('dpp',): n = max(n, 1)
    return n

class Asm:
    def __init__(self):
        self.lines = []
        self.hist = []
        self.vm = []
        self.lg = []
        self.nops = 0
        self.count = {}
    def raw(self, s):
        self.lines.append(s)
    def comment(self, s):
        self.lines.append('  ; ' + s)
    def label(self, name, pad=True):
        self.lines.append(name + ':')
    def I(self, text, tag=None):
        X = classify(text)
        dist = 0; req = 0
        for P in reversed(self.hist):
            n = need(P, X)
            if n - dist > req: req = n - dist
            dist += P.states
            if dist >= 20: break
        while req > 0:
            k = min(req, 16)
            self._push('s_nop %d' % (k - 1)); req -= k; self.nops += 1
        self._push(text, X)
        if X.cls == 'vmem' and not X.mn.startswith(('buffer_wbl2', 'buffer_inv')):
            self.vm.append(tag)
        if X.cls == 'ds':
            self.lg.append(tag)
        self.count[X.cls] = self.count.get(X.cls, 0) + 1
    def _push(self, text, X=None):
        if X is None: X = classify(text)
        self.lines.append('  ' + text)
        self.hist.append(X)
        if len(self.hist) > 40: self.hist = self.hist[-24:]
    def _cnt(self, lst, tags):
        last = -1
        for i, t in enumerate(lst):
            if t in tags: last = i
        return None if last < 0 else len(lst) - 1 - last
    def wait(self, vm=None, lg=None):
        parts = []
        if vm is not None:
            if vm == 'all': n = 0 if self.vm else None
            else: n = self._cnt(self.vm, set(vm) if isinstance(vm, (list, tuple, set)) else {vm})
            if n is not None:
                n = min(n, 63)
                parts.append('vmcnt(%d)' % n)
                self.vm = self.vm[len(self.vm) - n:] if n else []
        if lg is not None:
            if lg == 'all':
                parts.append('lgkmcnt(0)'); self.lg = []
            else:
                n = self._cnt(self.lg, set(lg) if isinstance(lg, (list, tuple, set)) else {lg})
                if n is not None:
                    n2 = min(n, 15)
                    parts.append('lgkmcnt(%d)' % n2)
                    self.lg = self.lg[len(self.lg) - n2:] if n2 else []
        if parts:
            self.I('s_waitcnt ' + ' '.join(parts))
    def check_vm(self):
        assert len(self.vm) <= 63, 'too many outstanding vmem %d' % len(self.vm)
    def text(self):
        return '\n'.join(self.lines) + '\n'
```

```python
from emit import Asm
from layout import *

NQ, NG, NU, NO, ND, NX, NZ = 96, 112, 112, 32, 112, 128, 16
U_Q = 0; U_X = U_Q + NQ; U_Z = U_X + NX; U_O = U_Z + NZ; U_G = U_O + NO; U_U = U_G + NG; U_D = U_U + NU; U_END = U_D + ND

def gen_k0(a):
    I = a.I
    a.raw('.globl pack_kernel\n.p2align 8\n.type pack_kernel,@function\npack_kernel:')
    I(f's_cmp_ge_u32 s2, {U_END}')
    I('s_cbranch_scc1 P_end')
    I('s_load_dwordx16 s[16:31], s[0:1], 0')
    I('s_load_dwordx2 s[32:33], s[0:1], 72')
    I('v_lshlrev_b32 v1, 4, v0')
    I('v_and_b32 v2, 15, v0')
    I('v_bfe_u32 v3, v0, 4, 1')
    I('v_lshrrev_b32 v4, 5, v0')
    I('s_mov_b32 s11, 0x20000')
    I('s_mov_b32 s7, 0x20000')
    I(f's_mov_b32 s6, {WS_USED}')
    I('s_waitcnt lgkmcnt(0)')
    I('s_mov_b32 s4, s32')
    I('s_mov_b32 s5, s33')
    I('s_movk_i32 s40, 256')
    I('s_movk_i32 s41, 256')
    I('s_mov_b32 s42, 0')
    I('s_mov_b32 s43, 0')
    I('s_mov_b32 s44, 0')
    I(f's_cmp_lt_u32 s2, {U_X}'); I('s_cbranch_scc1 P_q')
    I(f's_cmp_lt_u32 s2, {U_Z}'); I('s_cbranch_scc1 P_x')
    I(f's_cmp_lt_u32 s2, {U_O}'); I('s_cbranch_scc1 P_z')
    I(f's_cmp_lt_u32 s2, {U_G}'); I('s_cbranch_scc1 P_o')
    I(f's_cmp_lt_u32 s2, {U_D}'); I('s_cbranch_scc1 P_gu')
    I(f's_sub_u32 s3, s2, {U_D}')
    I('s_and_b32 s34, s3, 7')
    I('s_lshr_b32 s35, s3, 3')
    I('s_mov_b32 s8, s28'); I('s_mov_b32 s9, s29'); I(f's_mov_b32 s10, {1792*1024}')
    I('s_movk_i32 s36, 1024')
    I(f's_mul_i32 s38, s34, {224*KB}')
    I('s_lshl_b32 s39, s35, 14')
    I('s_add_u32 s38, s38, s39')
    I(f's_add_u32 s38, s38, {WD_P}')
    I('s_movk_i32 s45, 2048')
    I('s_movk_i32 s46, 1024')
    I('s_branch P_w')
    a.label('P_o')
    I(f's_sub_u32 s3, s2, {U_O}')
    I('s_and_b32 s34, s3, 7')
    I('s_lshr_b32 s35, s3, 3')
    I('s_mov_b32 s8, s20'); I('s_mov_b32 s9, s21'); I(f's_mov_b32 s10, {512*1024}')
    I('s_movk_i32 s36, 1024')
    I('s_lshl_b32 s38, s34, 16')
    I('s_lshl_b32 s39, s35, 14')
    I('s_add_u32 s38, s38, s39')
    I(f's_add_u32 s38, s38, {WO_P}')
    I('s_movk_i32 s45, 2048')
    I('s_movk_i32 s46, 1024')
    I('s_branch P_w')
    a.label('P_gu')
    I(f's_sub_u32 s3, s2, {U_G}')
    I('s_mov_b32 s8, s24'); I('s_mov_b32 s9, s25')
    I('s_mov_b32 s47, 0')
    I(f's_cmp_lt_u32 s3, {NG}'); I('s_cbranch_scc1 P_gu2')
    I(f's_sub_u32 s3, s3, {NG}')
    I('s_mov_b32 s8, s26'); I('s_mov_b32 s9, s27')
    I('s_movk_i32 s47, 256')
    a.label('P_gu2')
    I(f's_mov_b32 s10, {512*3584}')
    I('s_lshr_b32 s34, s3, 2')
    I('s_and_b32 s35, s3, 3')
    I('s_movk_i32 s36, 3584')
    I('s_lshl_b32 s38, s34, 17')
    I('s_lshl_b32 s39, s35, 13')
    I('s_add_u32 s38, s38, s39')
    I('s_add_u32 s38, s38, s47')
    I(f's_add_u32 s38, s38, {WGU_P}')
    I('s_movk_i32 s45, 1024')
    I('s_mov_b32 s46, 0x10000')
    I('s_mov_b32 s40, 0x8000')
    I('s_movk_i32 s41, 1024')
    I('s_mov_b32 s42, 1')
    I('s_lshl_b32 s43, s34, 12')
    I('s_add_u32 s43, s43, s47')
    I(f's_add_u32 s43, s43, {WGU_C}')
    I('s_movk_i32 s44, 2048')
    I('s_branch P_w')
    a.label('P_q')
    I('s_lshr_b32 s34, s2, 2')
    I('s_and_b32 s35, s2, 3')
    I('s_lshr_b32 s47, s2, 5')
    I('s_and_b32 s48, s34, 7')
    I('s_mov_b32 s8, s18'); I('s_mov_b32 s9, s19'); I(f's_mov_b32 s10, {512*3072}')
    I('s_movk_i32 s36, 3072')
    I(f's_mul_i32 s38, s48, {192*KB}')
    I(f's_mov_b32 s46, {96*KB}')
    I('s_mov_b32 s42, 1')
    I(f's_mul_i32 s43, s48, {6*KB}')
    I(f's_add_u32 s43, s43, {WQKV_C}')
    I('s_movk_i32 s44, 3072')
    I('s_cmp_eq_u32 s47, 0'); I('s_cbranch_scc0 P_q2')
    I('s_lshl_b32 s39, s35, 13')
    I('s_add_u32 s38, s38, s39')
    I(f's_add_u32 s38, s38, {WQKV_P + 64*KB}')
    I('s_movk_i32 s45, 1024')
    I('s_add_u32 s43, s43, 2048')
    I('s_branch P_w')
    a.label('P_q2')
    I('s_sub_u32 s47, s47, 1')
    I('s_lshl_b32 s47, s47, 10')
    I('s_lshl_b32 s39, s35, 14')
    I('s_add_u32 s38, s38, s39')
    I('s_add_u32 s38, s38, s47')
    I(f's_add_u32 s38, s38, {WQKV_P}')
    I('s_movk_i32 s45, 2048')
    I('s_add_u32 s43, s43, s47')
    a.label('P_w')
    I('s_mul_i32 s37, s35, s36')
    I('s_add_u32 s37, s37, s34')
    I('s_lshl_b32 s37, s37, 7')
    I('s_lshl_b32 s49, s36, 3')
    I('v_lshrrev_b32 v5, 3, v0')
    I('v_mul_lo_u32 v5, v5, s36')
    I('v_and_b32 v6, 7, v0')
    I('v_lshl_add_u32 v5, v6, 4, v5')
    I('s_mov_b32 m0, 0')
    for i in range(16):
        I('buffer_load_dwordx4 v5, s[8:11], s37 offen lds', tag='ld')
        if i < 15:
            I('s_add_u32 m0, m0, 1024')
            I('s_add_u32 s37, s37, s49')
    I('v_lshrrev_b32 v6, 2, v2')
    I('v_lshl_add_u32 v6, v4, 2, v6')
    I('v_lshlrev_b32 v6, 7, v6')
    I('v_lshl_add_u32 v6, v3, 5, v6')
    I('v_and_b32 v7, 3, v0')
    I('v_lshl_add_u32 v6, v7, 3, v6')
    I('v_mul_lo_u32 v7, v3, s40')
    I('v_lshl_add_u32 v7, v4, 9, v7')
    I('v_lshl_add_u32 v7, v2, 4, v7')
    I('v_mul_lo_u32 v8, v3, s41')
    I('v_lshl_add_u32 v8, v2, 4, v8')
    I('v_mov_b32 v9, 0x3f803f80')
    I('v_mov_b32 v10, 0')
    I('v_mov_b32 v11, 0')
    I('s_add_u32 s50, s38, s46')
    a.wait(vm='all')
    for ks in range(8):
        for ct in range(2):
            r = 16 + (ks * 2 + ct) * 4
            I(f'ds_read_b64_tr_b16 v[{r}:{r+1}], v6 offset:{ks*2048 + ct*64}', tag=(ks, ct))
            I(f'ds_read_b64_tr_b16 v[{r+2}:{r+3}], v6 offset:{ks*2048 + ct*64 + 1024}', tag=(ks, ct))
    a.wait(lg='all')
    for ks in range(8):
        for ct in range(2):
            r = 16 + (ks * 2 + ct) * 4
            I(f'buffer_store_dwordx4 v[{r}:{r+3}], v7, s[4:7], {"s38" if ct == 0 else "s50"} offen')
            for j in range(4):
                I(f'v_dot2c_f32_bf16 v{10+ct}, v{r+j}, v9')
        I('s_add_u32 s38, s38, s45')
        I('s_add_u32 s50, s50, s45')
    I('s_cmp_eq_u32 s42, 0'); I('s_cbranch_scc1 P_end')
    I('v_mov_b32 v12, v10')
    I('v_mov_b32 v13, v11')
    I('v_permlane32_swap_b32 v10, v12')
    I('v_permlane32_swap_b32 v11, v13')
    I('v_add_f32 v10, v10, v12')
    I('v_add_f32 v11, v11, v13')
    I('s_lshr_b32 s39, s35, 1')
    I('s_lshl_b32 s39, s39, 9')
    I('s_add_u32 s43, s43, s39')
    I('s_and_b32 s39, s35, 1')
    I('s_lshl_b32 s39, s39, 3')
    I('s_add_u32 s43, s43, s39')
    I('s_add_u32 s44, s44, s43')
    for ct in range(2):
        c = 10 + ct; o = 14 + 0
        d = 84 + ct * 2
        I(f'v_cvt_pk_bf16_f32 v{d}, v{c}, v{c}')
        I(f'v_and_b32 v12, 0xffff0000, v{d}')
        I(f'v_sub_f32 v12, v{c}, v12')
        I(f'v_cvt_pk_bf16_f32 v{d+1}, v12, 0')
    I('s_mov_b32 exec_hi, 0')
    I('buffer_store_dwordx2 v[84:85], v8, s[4:7], s43 offen')
    I('buffer_store_dwordx2 v[86:87], v8, s[4:7], s44 offen')
    I('s_endpgm')
    a.label('P_x')
    I(f's_sub_u32 s3, s2, {U_X}')
    I('s_lshr_b32 s34, s3, 1')
    I('s_and_b32 s35, s3, 1')
    I('s_mov_b32 s8, s16'); I('s_mov_b32 s9, s17'); I(f's_mov_b32 s10, {2048*1024}')
    I('s_lshl_b32 s37, s34, 15')
    I('s_lshl_b32 s39, s35, 9')
    I('s_add_u32 s37, s37, s39')
    I('v_and_b32 v5, 31, v0')
    I('v_lshlrev_b32 v5, 10, v5')
    I('v_lshl_add_u32 v5, v4, 4, v5')
    for ks in range(16):
        r = 16 + ks * 4
        I(f'buffer_load_dwordx4 v[{r}:{r+3}], v5, s[8:11], s37 offen offset:{ks*32}', tag=ks)
    I('s_lshl_b32 s38, s3, 14')
    I(f's_add_u32 s38, s38, {LB0 + XIN}')
    I('s_lshl_b32 s39, s3, 10')
    I(f's_add_u32 s39, s39, {LB0 + XST}')
    I('v_mov_b32 v9, 0x3f803f80')
    for j in range(4): I(f'v_mov_b32 v{12+j}, 0')
    for ks in range(16):
        r = 16 + ks * 4
        a.wait(vm=[ks])
        I(f'v_permlane32_swap_b32 v{r}, v{r+2}')
        I(f'v_permlane32_swap_b32 v{r+1}, v{r+3}')
        I(f'buffer_store_dwordx4 v[{r}:{r+3}], v1, s[4:7], s38 offen offset:{(ks%4)*1024}', tag='st')
        if ks % 4 == 3: I('s_add_u32 s38, s38, 4096')
        for j in range(4):
            I(f'v_dot2c_f32_bf16 v12, v{r+j}, v9')
        for j in range(4):
            I(f'v_dot2c_f32_bf16 v13, v{r+j}, v{r+j}')
    I('buffer_store_dwordx4 v[12:15], v1, s[4:7], s39 offen')
    I('s_endpgm')
    a.label('P_z')
    I(f's_sub_u32 s3, s2, {U_Z}')
    I('s_lshr_b32 s34, s3, 3')
    I('s_and_b32 s35, s3, 7')
    I(f's_mul_i32 s38, s34, {LSTRIDE}')
    I('s_lshl_b32 s39, s35, 14')
    I('s_add_u32 s38, s38, s39')
    I(f's_add_u32 s38, s38, {LB0 + KV}')
    for j in range(4): I(f'v_mov_b32 v{12+j}, 0')
    for i in range(16):
        I(f'buffer_store_dwordx4 v[12:15], v1, s[4:7], s38 offen offset:{(i%4)*1024}')
        if i % 4 == 3: I('s_add_u32 s38, s38, 4096')
    a.label('P_end')
    I('s_endpgm')
    a.vm = []; a.lg = []

def kd(name, vgpr, acc, sgpr=96):
    return f""".p2align 6
.amdhsa_kernel {name}
  .amdhsa_next_free_vgpr {vgpr}
  .amdhsa_next_free_sgpr {sgpr}
  .amdhsa_accum_offset {acc}
  .amdhsa_group_segment_fixed_size 0
  .amdhsa_kernarg_size 80
  .amdhsa_user_sgpr_count 2
  .amdhsa_user_sgpr_kernarg_segment_ptr 1
  .amdhsa_system_sgpr_workgroup_id_x 1
.end_amdhsa_kernel
"""
```

```python
from emit import Asm
from layout import *

LA, LBB, LD, LC = 0, 32*KB, 64*KB, 96*KB
LE = 132*KB
L_QLN = LE
L_GLN = LE + 4*KB
L_KVRED = LE + 12*KB
L_RS = LE + 20*KB
L_DRED = LD
GU_SLOT = [LD, LA, LBB, LC, LD, LA, LBB]

VL, V16, V16B, V16C = 0, 1, 2, 3
VRR, VXS, VST, VOUT, VKVA, VRSA, VMEAN, VRSTD = 4, 5, 6, 7, 8, 9, 10, 11
VLN = 12
VT = 16
VA = 32
VACC = 64
VX = 128
ARES = 224
AMISC = 240

EPS6 = 0x358637bd
LOG2E = 0x3fb8aa3b

def vr(b, n=4): return f'v[{b}:{b+n-1}]'
def ar(b, n=4): return f'a[{b}:{b+n-1}]'

class G:
    def __init__(self, a, stamps=False, stop=None):
        self.a = a; self.I = a.I; self.stamps = stamps; self.stop = stop
        self.m0 = None; self.sg = {}; self.nlab = 0; self.nstamp = 0
    def lab(self, p='L'):
        self.nlab += 1; return f'{p}{self.nlab}'
    def soff(self, tmp, base, off):
        g = off // 4096
        if g == 0 and self.sg.get(tmp) != (base, g):
            return base, off
        if self.sg.get(tmp) != (base, g):
            self.I(f's_add_u32 {tmp}, {base}, {g*4096}'); self.sg[tmp] = (base, g)
        return tmp, off % 4096
    def forget(self):
        self.sg = {}; self.m0 = None
    def ld(self, dst, tmp, base, off, tag, voff=f'v{V16}', fl='sc1'):
        s, imm = self.soff(tmp, base, off)
        self.I(f'buffer_load_dwordx4 {dst}, {voff}, s[4:7], {s} offen offset:{imm} {fl}', tag=tag)
    def st(self, src, tmp, base, off, tag, voff=f'v{V16}', srd='s[4:7]', fl='sc0 sc1', w='x4'):
        s, imm = self.soff(tmp, base, off)
        self.I(f'buffer_store_dword{w} {src}, {voff}, {srd}, {s} offen offset:{imm} {fl}', tag=tag)
    def dma(self, tmp, base, off, ldsbase_s, lds_off, tag, fl=''):
        s, imm = self.soff(tmp, base, off)
        key = (ldsbase_s, lds_off - imm)
        if self.m0 != key:
            self.I(f's_add_u32 m0, {ldsbase_s}, {lds_off - imm}'); self.m0 = key
        self.I(f'buffer_load_dwordx4 v{V16}, s[4:7], {s} offen offset:{imm} {fl} lds', tag=tag)
    def dsr(self, dst, addr, tag):
        b = [V16, V16B, V16C][addr // 65536]
        self.I(f'ds_read_b128 {dst}, v{b} offset:{addr % 65536}', tag=tag)
    def mfma(self, d, A, B, first=False):
        self.I(f'v_mfma_f32_32x32x16_bf16 {vr(d,16)}, {A}, {B}, {"0" if first else vr(d,16)}')
    def stamp(self):
        if not self.stamps: return
        I = self.I
        k = self.nstamp; self.nstamp += 1
        I(f's_memrealtime s[70:71]')
        I('s_waitcnt lgkmcnt(0)'); self.a.lg = []
        I(f'v_mov_b32 v31, s70')
        I(f's_lshl_b32 s72, s15, 7')
        I(f's_add_u32 s72, s72, s73')
        I(f'buffer_store_dword v31, off, s[4:7], s72 offset:{k*4}', tag='stamp')
    def poll(self, soffreg, target):
        I = self.I; L = self.lab('PL'); D = self.lab('PD')
        I('s_mov_b32 s50, 0')
        self.a.label(L)
        I('s_mov_b32 s51, 0')
        I(f's_atomic_add s51, s[12:13], {soffreg} glc')
        I('s_waitcnt lgkmcnt(0)'); self.a.lg = []
        I(f's_cmp_ge_u32 s51, {target}')
        I(f's_cbranch_scc1 {D}')
        I('s_add_u32 s50, s50, 1')
        I('s_cmp_lt_u32 s50, 20000')
        I(f's_cbranch_scc1 {L}')
        self.a.label(D)
    def signal(self, soffreg, base='s[12:13]'):
        self.I('s_mov_b32 s52, 1')
        self.I(f's_atomic_add s52, {base}, {soffreg}')
    def run(self, mf, *queues):
        acc = [0.0] * len(queues)
        for m in mf:
            m()
            for qi, (q, rate) in enumerate(queues):
                acc[qi] += rate
                while acc[qi] >= 1.0 - 1e-9 and q:
                    q.pop(0)(); acc[qi] -= 1.0
                if not q: acc[qi] = 0.0
    def drain(self, *qs):
        for q in qs:
            while q: q.pop(0)()
    def S(self, text, tag=None):
        return lambda: self.I(text, tag=tag)

    def setup(self):
        I = self.I
        self.a.raw('.globl main_kernel\n.p2align 8\n.type main_kernel,@function\nmain_kernel:')
        I('s_cmp_ge_u32 s2, 256')
        I('s_cbranch_scc1 M_exit')
        I('s_load_dwordx2 s[4:5], s[0:1], 72')
        I('s_load_dwordx2 s[8:9], s[0:1], 56')
        I('v_lshrrev_b32 v16, 6, v0')
        I('v_and_b32 v0, 63, v0')
        I('v_readfirstlane_b32 s14, v16')
        I(f's_mov_b32 s6, {STAMP + 0x100000}')
        I('s_mov_b32 s7, 0x20000')
        I(f's_mov_b32 s10, {2048*1024}')
        I('s_mov_b32 s11, 0x20000')
        I('s_and_b32 s40, s2, 7')
        I('s_lshr_b32 s41, s2, 3')
        I('s_lshr_b32 s42, s40, 1')
        I('s_and_b32 s43, s40, 1')
        I('s_lshr_b32 s44, s41, 3'); I('s_lshl_b32 s17, s42, 2'); I('s_add_u32 s17, s17, s44')
        I('s_and_b32 s44, s41, 7'); I('s_lshl_b32 s18, s43, 3'); I('s_add_u32 s18, s18, s44')
        I('s_lshr_b32 s44, s41, 2'); I('s_lshl_b32 s19, s42, 3'); I('s_add_u32 s19, s19, s44')
        I('s_and_b32 s44, s41, 3'); I('s_lshl_b32 s20, s43, 2'); I('s_add_u32 s20, s20, s44')
        I('s_lshl_b32 s21, s17, 2'); I('s_add_u32 s21, s21, s14')
        I('s_lshl_b32 s22, s14, 13')
        I('s_lshl_b32 s23, s14, 10')
        I(f's_mul_i32 s24, s14, {9*KB}')
        I(f's_mul_i32 s25, s18, {96*KB}'); I('s_add_u32 s25, s25, s22')
        I(f's_mul_i32 s26, s18, {3*KB}'); I('s_add_u32 s26, s26, s23'); I(f's_add_u32 s26, s26, {WQKV_C}')
        I('s_lshl_b32 s27, s20, 16'); I('s_lshl_b32 s44, s14, 14'); I('s_add_u32 s27, s27, s44'); I(f's_add_u32 s27, s27, {WO_P}')
        I(f's_mul_i32 s28, s18, {224*KB}'); I('s_add_u32 s28, s28, s22'); I(f's_add_u32 s28, s28, {WGU_P}')
        I(f's_mul_i32 s29, s18, {7*KB}'); I('s_lshl_b32 s44, s14, 11'); I('s_add_u32 s29, s29, s44'); I(f's_add_u32 s29, s29, {WGU_C}')
        I(f's_mul_i32 s30, s20, {224*KB}'); I(f's_mul_i32 s44, s14, {56*KB}'); I('s_add_u32 s30, s30, s44'); I(f's_add_u32 s30, s30, {WD_P}')
        I('s_lshl_b32 s31, s14, 11')
        I(f's_mov_b32 s32, {EPS6}')
        I(f's_mov_b32 s33, {LOG2E}')
        I('s_mov_b32 s15, 0')
        I(f's_mov_b32 s16, {LB0}')
        if self.stamps:
            I('s_lshl_b32 s73, s2, 2'); I('s_add_u32 s73, s73, s14'); I('s_lshl_b32 s73, s73, 8'); I(f's_add_u32 s73, s73, {STAMP}')
        I(f'v_lshlrev_b32 v{V16}, 4, v0')
        I(f'v_add_u32 v{V16B}, 0x10000, v{V16}')
        I(f'v_add_u32 v{V16C}, 0x20000, v{V16}')
        I('v_and_b32 v16, 7, v0')
        I('v_bfe_u32 v17, v0, 3, 2')
        I('v_lshrrev_b32 v18, 5, v0')
        I('v_and_b32 v19, 31, v0')
        I('v_lshlrev_b32 v20, 4, v16')
        I('v_lshl_add_u32 v20, v18, 9, v20')
        I(f'v_lshl_add_u32 v{VXS}, v17, 10, v20')
        I('v_lshl_add_u32 v21, v17, 11, v20')
        I('v_lshrrev_b32 v22, 1, v17')
        I('v_lshl_add_u32 v21, v22, 7, v21')
        I('s_lshl_b32 s44, s14, 7')
        I(f's_add_u32 s44, s44, {LC}')
        I(f'v_add_u32 v{VRR}, s44, v21')
        I(f'v_lshlrev_b32 v{VST}, 4, v16')
        I('v_lshlrev_b32 v21, 10, v16')
        I('v_lshl_add_u32 v21, v17, 5, v21')
        I(f'v_lshl_add_u32 v{VOUT}, v18, 4, v21')
        I('v_min_u32 v21, 16, v19')
        I('v_lshlrev_b32 v21, 6, v21')
        I('v_lshl_add_u32 v21, v18, 5, v21')
        I(f's_add_u32 s44, s24, {LC}')
        I(f'v_add_u32 v{VKVA}, s44, v21')
        I('s_lshl_b32 s44, s14, 7')
        I(f's_add_u32 s44, s44, {L_RS}')
        I('v_lshlrev_b32 v21, 4, v18')
        I(f'v_add_u32 v{VRSA}, s44, v21')
        I('v_lshlrev_b32 v21, 2, v19')
        I('v_add_u32 v21, s44, v21')
        I(f'v_accvgpr_write_b32 a{AMISC}, v21')
        I('v_lshl_add_u32 v21, v19, 1, v18')
        I('v_lshlrev_b32 v21, 5, v21')
        I(f's_add_u32 s44, s31, {L_KVRED}')
        I('v_add_u32 v21, s44, v21')
        I(f'v_accvgpr_write_b32 a{AMISC+1}, v21')
        I('s_lshl_b32 s44, s14, 8')
        I('v_lshlrev_b32 v21, 2, v0')
        I('v_add_u32 v21, s44, v21')
        I(f'v_accvgpr_write_b32 a{AMISC+3}, v21')
        I(f'v_add_u32 v21, {L_KVRED}, v21')
        I(f'v_accvgpr_write_b32 a{AMISC+2}, v21')
        I('v_and_b32 v21, 3, v0')
        I('v_bfe_u32 v22, v0, 2, 1')
        I('v_lshl_add_u32 v21, v22, 3, v21')
        I('v_bfe_u32 v22, v0, 3, 1')
        I('v_lshl_add_u32 v21, v22, 2, v21')
        I('v_lshlrev_b32 v21, 2, v21')
        I('v_bfe_u32 v22, v0, 4, 1')
        I('v_mul_u32_u24 v22, 1088, v22')
        I('v_add3_u32 v21, v21, v22, 64')
        I('v_add_u32 v21, 960, v21')
        I(f'v_accvgpr_write_b32 a{AMISC+4}, v21')
        I(f's_add_u32 s44, s24, {LC}')
        I(f'v_add_u32 v21, s44, v{V16}')
        I(f'v_accvgpr_write_b32 a{AMISC+5}, v21')
        I('s_waitcnt lgkmcnt(0)')
        self.stamp_init = True

    def layer_regs(self):
        I = self.I
        I(f's_add_u32 s44, s16, {FLG}')
        I('s_add_u32 s12, s4, s44')
        I('s_addc_u32 s13, s5, 0')
        I(f's_add_u32 s58, s12, {LSTRIDE}')
        I('s_addc_u32 s59, s13, 0')
        I('s_lshl_b32 s44, s21, 15'); I('s_add_u32 s34, s16, s44')
        I('s_lshl_b32 s44, s21, 11'); I('s_add_u32 s35, s16, s44')
        I('s_lshl_b32 s44, s19, 16'); I('s_add_u32 s36, s16, s44')
        I('s_lshl_b32 s44, s20, 12'); I('s_add_u32 s37, s36, s44'); I('s_lshl_b32 s45, s14, 7'); I('s_add_u32 s37, s37, s45')
        I('s_lshl_b32 s44, s19, 12'); I('s_add_u32 s38, s16, s44'); I('s_add_u32 s38, s38, s45')
        I('s_lshr_b32 s44, s20, 1'); I('s_lshl_b32 s44, s44, 9'); I('s_add_u32 s38, s38, s44')
        I('s_and_b32 s44, s20, 1'); I('s_lshl_b32 s44, s44, 3'); I('s_add_u32 s38, s38, s44')
        self.forget()

    def q_wqkv(self):
        q = []
        for part, slot in ((0, LA), (1, LBB), (2, LC)):
            for i in range(8):
                q.append(lambda part=part, slot=slot, i=i: self.dma('s46', 's25', part*32*KB + i*KB, 's22', slot + i*KB, 'wqkv'))
        q.append(lambda: self.dma('s46', 's26', 0, 's23', L_QLN, 'wqkv'))
        return q
    def q_wgu(self, t):
        return [lambda i=i: self.dma('s46', 's28', t*32*KB + i*KB, 's22', GU_SLOT[t] + i*KB, ('wgu', t)) for i in range(8)]
    def q_gln(self):
        return [lambda i=i: self.dma('s46', 's29', i*KB, 's31', L_GLN + i*KB, ('wgu', 0)) for i in range(2)]
    def q_wd(self, lo, hi):
        return [lambda i=i: self.ld(ar(i*4), 's47', 's30', i*KB, 'wd', fl='') for i in range(lo, hi)]
    def q_x(self, xoff, stoff):
        q = [lambda i=i: self.ld(vr(VT + 4*i), 's48', 's35', stoff + i*KB, 'xst') for i in range(2)]
        q += [lambda k=k: self.ld(vr(VX + 4*k), 's48', 's34', xoff + k*KB, ('x', k)) for k in range(32)]
        return q
    def q_stats(self, table):
        S = self.S
        q = [lambda: self.a.wait(vm=['xst'])]
        q += [S('v_add_f32 v16, v16, v18'), S('v_add_f32 v17, v17, v19'), S('v_add_f32 v20, v20, v22'), S('v_add_f32 v21, v21, v23'),
              S('v_add_f32 v16, v16, v20'), S('v_add_f32 v17, v17, v21'),
              S('v_mov_b32 v18, v16'), S('v_mov_b32 v19, v17'),
              S('v_permlane32_swap_b32 v16, v18'), S('v_permlane32_swap_b32 v17, v19'),
              S('v_add_f32 v16, v16, v18'), S('v_add_f32 v17, v17, v19'),
              S('v_mul_f32 v16, 0xbb000000, v16'),
              S('v_mul_f32 v17, 0x3b000000, v17'),
              S('v_fma_f32 v17, -v16, v16, v17'),
              S('v_max_f32 v17, 0, v17'),
              S('v_add_f32 v17, 0x3727c5ac, v17'),
              S(f'v_rsq_f32 v{VRSTD}, v17'),
              S(f'v_cvt_pk_bf16_f32 v{VLN+1}, v16, 0'),
              S(f'v_lshlrev_b32 v18, 16, v{VLN+1}'),
              S('v_sub_f32 v18, v16, v18'),
              S(f'v_cvt_pk_bf16_f32 v{VLN}, v16, v18'),
              S(f'v_mov_b32 v{VLN+3}, v{VLN+1}'),
              S(f'v_mov_b32 v{VLN+2}, v{VLN}')]
        if table:
            q += [S(f'v_accvgpr_read_b32 v18, a{AMISC}'),
                  S(f'ds_write_b32 v18, v{VRSTD}', tag='rsw')]
            q += [S(f'ds_read_b128 {vr(112 + 4*g)}, v{VRSA} offset:{g*32}', tag='rs') for g in range(4)]
        else:
            q += [S(f'v_mul_f32 v{VMEAN}, v{VRSTD}, v{VRSTD}')]
        return q
    def phi(self, r, sc, tmp):
        S = self.S
        return [S(f'v_fma_f32 v{r}, v{r}, {sc}, s32'), S(f'v_mul_f32 v{tmp}, s33, v{r}'), S(f'v_exp_f32 v{tmp}, v{tmp} clamp'),
                S(f'v_max_f32 v{r}, s32, v{r}'), S(f'v_add_f32 v{r}, v{r}, v{tmp}')]

    class ARing:
        def __init__(self, g, addrs, depth=6):
            self.g = g; self.addrs = addrs; self.n = 0; self.depth = depth; self.uid = g.lab('r'); self.limit = len(addrs)
        def fill(self, upto):
            while self.n < min(upto, self.limit):
                self.g.dsr(vr(VA + 4*(self.n % 8)), self.addrs[self.n], (self.uid, self.n)); self.n += 1
        def get(self, i):
            self.fill(i + 1)
            self.g.a.wait(lg=[(self.uid, i)])
            return vr(VA + 4*(i % 8))
        def after(self, i):
            self.fill(i + 1 + self.depth)

    def qkv(self):
        I = self.I; a = self.a; S = self.S
        AK, AV, AQ = 64, 80, 96
        L = self.lab()
        I('s_cmp_eq_u32 s15, 0'); I(f's_cbranch_scc1 {L}')
        I('s_lshl_b32 s44, s21, 7')
        if F_X: I(f's_add_u32 s44, s44, {F_X*128}')
        self.poll('s44', 8)
        a.label(L)
        self.stamp()
        qx = self.q_x(XIN, XST)
        for _ in range(12): qx.pop(0)()
        addrs = []
        for ks in range(32): addrs += [LA + ks*2*KB, LA + ks*2*KB + KB]
        addrs += [L_QLN, L_QLN + KB]
        addrs += [LC + ks*KB for ks in range(32)] + [L_QLN + 2*KB]
        R = self.ARing(self, addrs)
        R.fill(6)
        def mk(i, acc, ks, swap):
            def f():
                if ks < 32: a.wait(vm=[('x', ks)])
                w = R.get(i)
                x = vr(VX + 4*ks) if ks < 32 else vr(VLN)
                if swap: self.mfma(acc, x, w, first=(ks == 0))
                else: self.mfma(acc, w, x, first=(ks == 0))
                R.after(i)
            return f
        m1 = []
        for ks in range(33): m1 += [mk(2*ks, AK, ks, True), mk(2*ks + 1, AV, ks, True)]
        qs = self.q_stats(True)
        self.run(m1, (qx, 0.5), (qs, 1))
        self.drain(qx, qs)
        m2 = [mk(66 + ks, AQ, ks, False) for ks in range(33)]
        e = [lambda: a.wait(lg=['rs'])]
        for r in range(16):
            e += self.phi(AK + r, f'v{112+r}', 30 + (r & 1))
            if r == 0: e += [S(f'v_mov_b32 v{VMEAN}, v{AK}')]
            else: e += [S(f'v_add_f32 v{VMEAN}, v{VMEAN}, v{AK+r}')]
            if r & 1: e += [S(f'v_cvt_pk_bf16_f32 v{16 + r//2}, v{AK+r-1}, v{AK+r}')]
        for r in range(16):
            e += [S(f'v_mul_f32 v{AV+r}, v{AV+r}, v{112+r}')]
            if r & 1: e += [S(f'v_cvt_pk_bf16_f32 v{112 + r//2}, v{AV+r-1}, v{AV+r}')]
        e += [lambda: self.mfma(AK, vr(16), vr(112), first=True), lambda: self.mfma(AK, vr(20), vr(116))]
        e += [S(f'v_mov_b32 v24, v{VMEAN}'), S(f'v_accvgpr_read_b32 v25, a{AMISC+1}'), S(f'v_accvgpr_read_b32 v26, a{AMISC+4}'),
              S(f'v_permlane32_swap_b32 v24, v{VMEAN}'), S(f'v_add_f32 v24, v24, v{VMEAN}'),
              S(f's_mul_i32 s49, s18, 2176'), S(f's_add_u32 s49, s49, s16'), S(f's_add_u32 s49, s49, {KV}')]
        def zat():
            I('s_mov_b32 exec_hi, 0')
            I('buffer_atomic_add_f32 v24, v26, s[4:7], s49 offen', tag='kvat')
            I('s_mov_b64 exec, -1')
        e += [zat]
        def kvw():
            I('s_mov_b32 exec_lo, 0x0000ffff'); I('s_mov_b32 exec_hi, 0x0000ffff')
            I(f'ds_write_b128 v25, {vr(AK)}', tag='kvw'); I(f'ds_write_b128 v25, {vr(AK+4)} offset:16', tag='kvw')
            I('s_mov_b32 exec_lo, 0xffff0000'); I('s_mov_b32 exec_hi, 0xffff0000')
            I(f'ds_write_b128 v25, {vr(AK+8)}', tag='kvw'); I(f'ds_write_b128 v25, {vr(AK+12)} offset:16', tag='kvw')
            I('s_mov_b64 exec, -1')
        e += [kvw, S(f'v_accvgpr_read_b32 v25, a{AMISC+2}'), S(f'v_accvgpr_read_b32 v26, a{AMISC+3}')]
        def bar():
            a.wait(lg=['kvw']); I('s_barrier')
            for w in range(4):
                I(f'ds_read2st64_b32 v[{16+2*w}:{17+2*w}], v25 offset0:{8*w} offset1:{8*w+4}', tag='kvr')
            self.kvbar = True
        e += [bar]
        e += [lambda: a.wait(lg=['kvr'])]
        e += [S('v_add_f32 v16, v16, v18'), S('v_add_f32 v17, v17, v19'), S('v_add_f32 v20, v20, v22'), S('v_add_f32 v21, v21, v23'),
              S('v_add_f32 v16, v16, v20'), S('v_add_f32 v17, v17, v21'),
              S('buffer_atomic_add_f32 v16, v26, s[4:7], s49 offen', tag='kvat'),
              S('buffer_atomic_add_f32 v17, v26, s[4:7], s49 offen offset:1088', tag='kvat')]
        pf = self.q_wgu(0) + self.q_gln()
        self.run(m2, (e, 7), (pf, 0.5))
        self.drain(e, pf)
        for r in range(16):
            self.drain(self.phi(AQ + r, f'v{VRSTD}', 30 + (r & 1)))
            if r & 1: I(f'v_cvt_pk_bf16_f32 v{16 + r//2}, v{AQ+r-1}, v{AQ+r}')
        I('s_lshl_b32 s44, s18, 11'); I('s_add_u32 s49, s34, s44')
        self.st(vr(16), 's48', 's49', PQ, 'pq'); self.st(vr(20), 's48', 's49', PQ + KB, 'pq')
        a.wait(vm=['kvat'])
        I('s_barrier')
        L = self.lab()
        I('s_cmp_lg_u32 s14, 0'); I(f's_cbranch_scc1 {L}')
        I('s_lshl_b32 s44, s18, 7'); I(f's_add_u32 s44, s44, {F_KV1*128}')
        I('s_mov_b32 s52, 1')
        I('s_atomic_add s52, s[12:13], s44 glc')
        I('s_waitcnt lgkmcnt(0)'); a.lg = []
        I('s_cmp_lg_u32 s52, 15'); I(f's_cbranch_scc1 {L}')
        I('v_lshlrev_b32 v24, 7, v0'); I('v_mov_b32 v25, 1')
        I(f's_add_u32 s44, s16, {FLG + F_KV2*128}')
        I('s_mov_b64 exec, 0xffff')
        I('buffer_atomic_add v25, v24, s[4:7], s44 offen sc1')
        a.vm.pop()
        I('s_mov_b64 exec, -1')
        a.label(L)
        a.wait(vm='all')
        I('s_lshl_b32 s44, s21, 7'); I(f's_add_u32 s44, s44, {F_Q*128}')
        self.signal('s44')
        self.stamp()

    def fin_write(self, acc):
        S = self.S
        q = [S(f'v_accvgpr_read_b32 v29, a{AMISC+5}')]
        for f4 in range(4):
            for h in range(2):
                q.append(S(f'ds_write_b128 v29, {vr(acc + f4*8 + h*4)} offset:{f4*2*KB + (f4>>1)*128 + h*KB}', tag='fw'))
        return q
    def fin_rest(self, ti, T, xoff, stoff, final_ok):
        S = self.S; a = self.a; I = self.I
        def bar():
            a.wait(lg=['fw']); I('s_barrier')
            for w in range(4):
                for h in range(2):
                    I(f'ds_read_b128 {vr(T + w*8 + h*4)}, v{VRR} offset:{w*9*KB + h*KB}', tag=('fr', w))
        q = [bar]
        q += [S(f'v_accvgpr_read_b32 v{16+i}, a{ARES + ti*8 + i}') for i in range(8)]
        for w in range(4):
            q += [lambda w=w: a.wait(lg=[('fr', w)])]
            q += [S(f'v_add_f32 v{16+i}, v{16+i}, v{T + w*8 + i}') for i in range(8)]
        q += [S(f'v_cvt_pk_bf16_f32 v{24+i}, v{16+2*i}, v{17+2*i}') for i in range(4)]
        def stores():
            if final_ok:
                L = self.lab(); L2 = self.lab()
                I('s_cmp_eq_u32 s15, 1'); I(f's_cbranch_scc1 {L}')
            self.forget()
            self.st(vr(24), 's48', 's37', xoff + ti*32*KB, 'fx', voff=f'v{VXS}')
            I(f'v_add_f32 v{T}, v16, v17'); I(f'v_mul_f32 v{T+1}, v16, v16')
            for i in range(1, 8):
                if i > 1: I(f'v_add_f32 v{T}, v{T}, v{16+i}')
                I(f'v_fmac_f32 v{T+1}, v{16+i}, v{16+i}')
            I(f'v_add_f32_dpp v{T}, v{T}, v{T} row_ror:8 row_mask:0xf bank_mask:0xf')
            I(f'v_add_f32_dpp v{T+1}, v{T+1}, v{T+1} row_ror:8 row_mask:0xf bank_mask:0xf')
            for sw in ('v_permlane16_swap_b32', 'v_permlane32_swap_b32'):
                I(f'v_mov_b32 v{T+2}, v{T}'); I(f'v_mov_b32 v{T+3}, v{T+1}')
                I(f'{sw} v{T}, v{T+2}'); I(f'{sw} v{T+1}, v{T+3}')
                I(f'v_add_f32 v{T}, v{T}, v{T+2}'); I(f'v_add_f32 v{T+1}, v{T+1}, v{T+3}')
            I('s_mov_b64 exec, 0xff')
            self.st(vr(T, 2), 's48', 's38', stoff + ti*2*KB, 'fx', voff=f'v{VST}', w='x2')
            I('s_mov_b64 exec, -1')
            for i in range(8): I(f'v_accvgpr_write_b32 a{ARES + ti*8 + i}, v{16+i}')
            if final_ok:
                I(f's_branch {L2}')
                a.label(L)
                I('s_nop 1')
                I('v_permlane32_swap_b32 v24, v26'); I('v_permlane32_swap_b32 v25, v27')
                I('s_lshl_b32 s44, s19, 16'); I('s_add_u32 s44, s44, s22'); I('s_lshl_b32 s45, s20, 7'); I('s_add_u32 s44, s44, s45')
                if ti: I('s_add_u32 s44, s44, 0x8000')
                I(f'buffer_store_dwordx4 {vr(24)}, v{VOUT}, s[8:11], s44 offen')
                I('buffer_store_dword v24, off, s[8:11], s10')
                a.vm.pop(); a.vm.pop()
                I('s_nop 1')
                a.label(L2)
            self.forget()
        q += [stores]
        return q
    def fin_signal(self, ti, flag, nextlayer=False):
        I = self.I; a = self.a
        a.wait(vm=['fx'])
        I('s_barrier')
        L = self.lab()
        I('s_cmp_lg_u32 s14, 0'); I(f's_cbranch_scc1 {L}')
        I('s_lshl_b32 s44, s19, 8')
        I(f's_add_u32 s44, s44, {(flag + ti)*128}')
        self.signal('s44', 's[58:59]' if nextlayer else 's[12:13]')
        a.label(L)

    def wo(self):
        I = self.I; a = self.a; S = self.S
        WOF, PQF = 128, 192
        self.forget()
        for i in range(16): self.ld(vr(WOF + 4*i), 's47', 's27', i*KB, 'wo', fl='')
        self.drain(self.q_wgu(1), self.q_wgu(2))
        L = self.lab()
        I('s_cmp_eq_u32 s14, 3'); I(f's_cbranch_scc1 {L}')
        I('s_lshl_b32 s44, s19, 1'); I('s_add_u32 s44, s44, s14'); I(f's_add_u32 s44, s44, {F_Q}')
        I('s_and_b32 s45, s2, 15'); I(f's_add_u32 s45, s45, {F_KV2}')
        I('s_cmp_eq_u32 s14, 2'); I('s_cselect_b32 s44, s45, s44')
        I('s_lshl_b32 s44, s44, 7')
        self.poll('s44', 16)
        a.label(L)
        I('s_barrier')
        self.stamp()
        self.forget()
        I(f's_mul_i32 s49, s14, 8704'); I('s_add_u32 s49, s49, s16')
        for i in range(9): self.dma('s46', 's49', KV + i*KB, 's24', LC + i*KB, 'kv', fl='sc1')
        I('s_add_u32 s49, s36, s22')
        for ti in range(2):
            for h in range(8):
                self.ld(vr(PQF + (ti*8 + h)*4), 's48', 's49', PQ + ti*32*KB + h*KB, ('pq', ti, h))
        a.wait(vm=['kv'])
        for h in range(8):
            I(f'ds_read_b128 {vr(64 + h*8)}, v{VKVA} offset:{h*1088}', tag=('kvf', h))
            I(f'ds_read_b128 {vr(64 + h*8 + 4)}, v{VKVA} offset:{h*1088 + 16}', tag=('kvf', h))
        for h in range(8):
            a.wait(lg=[('kvf', h)])
            for i in range(4): I(f'v_cvt_pk_bf16_f32 v{VA + h*4 + i}, v{64 + h*8 + 2*i}, v{64 + h*8 + 2*i + 1}')
        a.wait(vm=['wo'])
        ACC = 64
        steps = [(ti, h) for ti in range(2) for h in range(8)]
        def num(s):
            ti, h = steps[s]
            a.wait(vm=[('pq', ti, h)])
            self.mfma(96 + 16*(s & 1), vr(VA + h*4), vr(PQF + (ti*8 + h)*4), first=True)
        def ov(s):
            T = 96 + 16*(s & 1); ti, h = steps[s]
            O = PQF + (ti*8 + h)*4
            q = [S(f'v_add_f32 v{T+8}, s32, v{T+8}'), S(f'v_rcp_f32 v{T+8}, v{T+8}')]
            for i in range(4):
                q += [S(f'v_mul_f32 v{T+2*i}, v{T+2*i}, v{T+8}'), S(f'v_mul_f32 v{T+2*i+1}, v{T+2*i+1}, v{T+8}'),
                      S(f'v_cvt_pk_bf16_f32 v{O+i}, v{T+2*i}, v{T+2*i+1}')]
            return q
        def main(s, ct):
            ti, h = steps[s]
            self.mfma(ACC + 16*ct, vr(WOF + (h*2 + ct)*4), vr(PQF + (ti*8 + h)*4), first=(h == 0))
        side = []
        num(0)
        for s in range(17):
            q = ov(s) if s < 16 else []
            if s + 1 < 16: num(s + 1)
            if s >= 1:
                if s - 1 == 8:
                    self.drain(self.fin_write(ACC)); a.wait(lg=['fw'])
                    side = self.fin_rest(0, PQF, X1, X1ST, False)
                main(s - 1, 0)
            for _ in range(7):
                if q: q.pop(0)()
            if s >= 1: main(s - 1, 1)
            self.drain(q)
            for _ in range(8):
                if side: side.pop(0)()
        self.drain(side)
        self.fin_signal(0, F_X1)
        self.drain(self.fin_write(ACC))
        self.drain(self.fin_rest(1, PQF, X1, X1ST, False))
        self.fin_signal(1, F_X1)
        self.stamp()

    def gu_down(self):
        I = self.I; a = self.a; S = self.S
        self.forget()
        self.drain(self.q_wgu(3), self.q_wd(0, 16))
        I('s_lshl_b32 s44, s21, 7'); I(f's_add_u32 s44, s44, {F_X1*128}')
        self.poll('s44', 8)
        self.stamp()
        qx = self.q_x(X1, X1ST)
        for _ in range(12): qx.pop(0)()
        addrs = []
        for ks in range(32): addrs += [GU_SLOT[0] + ks*KB, GU_SLOT[1] + ks*KB]
        addrs += [L_GLN, L_GLN + KB]
        start = {2: 66}
        for t in range(2, 7):
            start[t] = len(addrs)
            addrs += [GU_SLOT[t] + ks*KB for ks in range(32)] + [L_GLN + t*KB]
        R = self.ARing(self, addrs)
        accs = [64, 80, 96, 64, 80, 96, 64]
        R.limit = start[3]
        R.fill(6)
        def mk(i, t, ks, waitx):
            def f():
                if waitx and ks < 32: a.wait(vm=[('x', ks)])
                w = R.get(i)
                self.mfma(accs[t], w, vr(VX + 4*ks) if ks < 32 else vr(VLN), first=(ks == 0))
                R.after(i)
            return f
        I(f's_mul_i32 s49, s21, {112*KB}'); I('s_add_u32 s49, s49, s16'); I(f's_mul_i32 s44, s18, {7*KB}'); I('s_add_u32 s49, s49, s44')
        I(f's_add_u32 s49, s49, {H}')
        def epi(t):
            A = accs[t]; O = 24 + 0
            q = []
            for i in range(8):
                q += [S(f'v_mul_f32 v{A+i}, v{A+i}, v{A+8+i}'), S(f'v_mul_f32 v{A+i}, v{A+i}, v{VMEAN}')]
                if i & 1: q += [S(f'v_cvt_pk_bf16_f32 v{A+8+i//2}, v{A+i-1}, v{A+i}')]
            q += [lambda: self.st(vr(A+8), 's53', 's49', t*KB, ('h', t))]
            return q
        def tilebar(t):
            def f():
                a.wait(vm=[('wgu', t)], lg='all'); I('s_barrier')
                R.limit = start[t+1] if t < 6 else len(addrs)
            return f
        m = []
        for ks in range(33): m += [mk(2*ks, 0, ks, True), mk(2*ks + 1, 1, ks, True)]
        qs = self.q_stats(False)
        self.run(m, (qx, 0.5), (qs, 1))
        self.drain(qx, qs)
        I('s_lshl_b32 s54, s21, 2'); I('s_lshr_b32 s44, s18, 2'); I('s_add_u32 s54, s54, s44'); I('s_lshl_b32 s54, s54, 8'); I(f's_add_u32 s54, s54, {F_H*128}')
        I('s_add_u32 s55, s54, 128')
        order = [(0, t, f) for t in range(5) for f in range(4)] + [(1, t, f) for t in range(5) for f in range(4)] + \
                [(0, t, f) for t in (5, 6) for f in range(4)] + [(1, t, f) for t in (5, 6) for f in range(4)]
        def hld(n):
            ti, t, f = order[n]
            return lambda: self.ld(vr(VX + 4*(n % 32)), 's48', 's56', ti*112*KB + (f*7 + t)*KB, ('hh', n))
        wdq = self.q_wd(16, 56)
        vq = []
        ve = epi(0) + epi(1)
        for t in range(2, 7):
            m = [mk(start[t] + ks, t, ks, False) for ks in range(33)]
            if t == 2:
                m.insert(4, lambda: (I('s_barrier')))
                pre = m[:5]; m = m[5:]
                self.run(pre, (ve, 3))
                vq += self.q_wgu(4) + self.q_wgu(5)
            if t == 3:
                vq += self.q_wgu(6)
            if t < 6:
                m.insert(len(m) - 4, tilebar(t + 1))
            if t in (3, 4, 5):
                k = {3: 8, 4: 16, 5: 16}[t]
                vq += wdq[:k]; wdq = wdq[k:]
            if t == 6:
                def sigA():
                    a.wait(vm=[('h', 4)]); self.signal('s54')
                m.insert(2, sigA)
                def pollA():
                    I('s_lshl_b32 s44, s19, 3'); I('s_add_u32 s44, s44, s14'); I('s_lshl_b32 s57, s44, 8'); I(f's_add_u32 s57, s57, {F_H*128}')
                    self.poll('s57', 4)
                    I('s_add_u32 s44, s57, 1024')
                    self.poll('s44', 4)
                    I(f's_mul_i32 s56, s19, {224*KB}'); I('s_add_u32 s56, s56, s16'); I(f's_mul_i32 s44, s14, {28*KB}'); I('s_add_u32 s56, s56, s44')
                    I(f's_add_u32 s56, s56, {H}')
                    self.sg.pop('s48', None)
                    vq.extend([hld(n) for n in range(10)])
                self.run(m, (ve, 3), (vq, 0.5))
                self.drain(ve, vq)
                self.drain(epi(6))
                self.stamp()
                pollA()
                self.drain(vq)
                a.wait(vm=[('h', 6)]); self.signal('s55')
                break
            self.run(m, (ve, 3), (vq, 0.5))
            self.drain(ve)
            ve = epi(t)
        hq = [hld(n) for n in range(10, 56)]
        DACC = [96, 64]
        seen = set()
        def dm(n, ct):
            ti, t, f = order[n]
            def g():
                a.wait(vm=[('hh', n), 'wd'])
                first = (ti, ct) not in seen; seen.add((ti, ct))
                self.mfma(DACC[ti] + 16*ct, ar(((f*7 + t)*2 + ct)*4), vr(VX + 4*(n % 32)), first=first)
            return g
        def pollB():
            I('s_add_u32 s44, s57, 128'); self.poll('s44', 4)
            I('s_add_u32 s44, s57, 1152'); self.poll('s44', 4)
        hq.insert(30, pollB)
        m = []
        for n in range(48): m += [dm(n, 0), dm(n, 1)]
        self.run(m, (hq, 0.5))
        self.drain(hq)
        m = []
        for n in range(48, 56): m += [dm(n, 0), dm(n, 1)]
        side = [lambda: I('s_barrier')] + self.fin_write(DACC[0]) + self.fin_rest(0, VA, XIN + LSTRIDE, XST + LSTRIDE, True)
        self.run(m, (side, 5))
        self.drain(side)
        self.fin_signal(0, F_X, nextlayer=True)
        self.drain(self.fin_write(DACC[1]))
        self.drain(self.fin_rest(1, VA, XIN + LSTRIDE, XST + LSTRIDE, True))
        I('s_cmp_eq_u32 s15, 1'); I('s_cbranch_scc1 M_done')
        self.fin_signal(1, F_X, nextlayer=True)
        self.stamp()

def gen_k1(a, stamps=False, stop=None):
    g = G(a, stamps, stop); I = a.I
    g.setup()
    g.layer_regs()
    for ti in range(2): g.ld(vr(16 + 4*ti), 's48', 's37', XIN + ti*32*KB, 'res', voff=f'v{VXS}')
    a.wait(vm='all')
    for ti in range(2):
        for i in range(4):
            I(f'v_lshlrev_b32 v24, 16, v{16 + 4*ti + i}'); I(f'v_and_b32 v25, 0xffff0000, v{16 + 4*ti + i}')
            I(f'v_accvgpr_write_b32 a{ARES + ti*8 + 2*i}, v24'); I(f'v_accvgpr_write_b32 a{ARES + ti*8 + 2*i + 1}, v25')
    a.label('M_layer')
    g.nstamp = 0
    g.stamp()
    g.forget()
    g.drain(g.q_wqkv())
    a.wait(vm='all')
    I('s_barrier')
    g.qkv()
    g.wo()
    g.gu_down()
    I('s_add_u32 s15, s15, 1')
    I(f's_add_u32 s16, s16, {LSTRIDE}')
    g.layer_regs()
    I('s_branch M_layer')
    a.label('M_done')
    g.stamp()
    a.label('M_exit')
    I('s_endpgm')
```

```python
KB = 1024
WQKV_P = 0x000000
WQKV_C = 0x180000
WO_P   = 0x200000
WGU_P  = 0x280000
WGU_C  = 0x600000
WD_P   = 0x640000
LB0    = 0x800000
LSTRIDE = 0xE00000
XIN  = 0x000000
XST  = 0x200000
X1ST = 0x220000
KV   = 0x240000
FLG  = 0x249000
ZEND = 0x260000
PQ   = 0x300000
X1   = 0x500000
H    = 0x700000
WS_USED = LB0 + 2 * LSTRIDE
F_X   = 0
F_Q   = 64
F_KV1 = 128
F_KV2 = 144
F_X1  = 160
F_H   = 224
F_END = 224 + 512
assert FLG + F_END * 128 <= ZEND
STAMP = 0x2400000
```

```python
import sys
from emit import Asm
from layout import *
import k0
def build(path, with_main=True, **kw):
    a = Asm()
    hdr = open('interleave_layers__linear_attn_block__glu_gated_bilinear__prompt.s.ref').read().split('; Override')[0]
    a.raw(hdr.rstrip('\n'))
    a.raw(f'; @launch kernel=pack_kernel grid=({k0.U_END},1,1) block=(64,1,1) lds=16384')
    if with_main:
        a.raw('; @launch kernel=main_kernel grid=(256,1,1) block=(256,1,1) lds=163840')
    a.raw('.amdgcn_target "amdgcn-amd-amdhsa--gfx950"\n.text')
    k0.gen_k0(a)
    if with_main:
        import k1
        k1.gen_k1(a, **kw)
    a.raw('.section .rodata,"a"')
    a.raw(k0.kd('pack_kernel', 88, 88))
    if with_main:
        a.raw(k0.kd('main_kernel', 512, 256))
    open(path, 'w').write(a.text())
    return a
if __name__ == '__main__':
    a = build(sys.argv[1], with_main=('nomain' not in sys.argv), **({'stamps': True} if 'stamps' in sys.argv else {}))
    print('nops', a.nops, a.count)
```
